```python
import torch

def _softmax(x, axis=-1):
    return torch.softmax(x, dim=axis)
def _gelu(x):
    return torch.nn.functional.gelu(x, approximate="tanh")
def _silu(x):
    return torch.nn.functional.silu(x)
def _sigmoid(x):
    return torch.sigmoid(x)
def _layernorm(x, axis=-1, eps=1e-5):
    m = x.mean(dim=axis, keepdim=True)
    v = x.var(dim=axis, keepdim=True, unbiased=False)
    return (x - m) / torch.sqrt(v + eps)
def _scatter_add(tgt, idx, src, axis=0):
    return tgt.clone().index_add_(axis, idx, src)
def _segment_sum(src, seg, n):
    out = torch.zeros((n,) + src.shape[1:], dtype=src.dtype)
    return out.index_add_(0, seg, src)
def _pad(x, pw):
    flat = tuple(v for pair in reversed(pw) for v in pair)
    return torch.nn.functional.pad(x, flat)

kernel_name = 'parallel_sum__softmax_full_mha__glu_gated_bilinear__prompt'

def setup_inputs():

    _w = (lambda a: (lambda t: t.to(torch.bfloat16) if t.is_floating_point() else t)(torch.as_tensor(a)))
    def _A_setup():
        B, S, D = 1, 2048, 1024
        return {
            "x": _w((lambda *s: torch.randn(*s, dtype=torch.bfloat16) * 0.05)(B, S, D)),
            "wqkv": _w((lambda *s: torch.randn(*s, dtype=torch.bfloat16) * 0.05)(D, 3 * D)),
            "wo": _w((lambda *s: torch.randn(*s, dtype=torch.bfloat16) * 0.05)(D, D)),
        }
    _A_in = _A_setup()

    def _B_setup():
        B, S, D, F = 1, 2048, 1024, 3584
        return {
            "x": _w((lambda *s: torch.randn(*s, dtype=torch.bfloat16) * 0.05)(B, S, D)),
            "w_gate": _w((lambda *s: torch.randn(*s, dtype=torch.bfloat16) * 0.8)(D, F) * (D ** -0.5)),
            "w_up": _w((lambda *s: torch.randn(*s, dtype=torch.bfloat16) * 0.8)(D, F) * (D ** -0.5)),
            "w_down": _w((lambda *s: torch.randn(*s, dtype=torch.bfloat16) * 0.8)(F, D) * (F ** -0.5)),
        }
    _B_in = _B_setup()

    return {
        "A_x": _A_in["x"],
        "A_wqkv": _A_in["wqkv"],
        "A_wo": _A_in["wo"],
        "B_x": _B_in["x"],
        "B_w_gate": _B_in["w_gate"],
        "B_w_up": _B_in["w_up"],
        "B_w_down": _B_in["w_down"],
    }

def reference(A_x, A_wqkv, A_wo, B_x, B_w_gate, B_w_up, B_w_down):
    def _A_ref(x, wqkv, wo):
        B, S, D = x.shape
        H = 32; Dh = D // H
        qkv = (lambda x, *d: x.permute(*d))((x @ wqkv).reshape(B, S, 3, H, Dh), 2, 0, 3, 1, 4)
        q, k, v = qkv[0], qkv[1], qkv[2]
        scale = Dh ** -0.5
        scores = torch.einsum("bhqd,bhkd->bhqk", q, k) * scale
        p = _softmax(scores, axis=-1)
        o = torch.einsum("bhqk,bhkd->bhqd", p, v)
        return (lambda x, *d: x.permute(*d))(o, 0, 2, 1, 3).reshape(B, S, D) @ wo

    def _B_ref(x, w_gate, w_up, w_down):
        g = torch.einsum("bsd,df->bsf", x, w_gate)
        u = torch.einsum("bsd,df->bsf", x, w_up)
        h = g * u
        return torch.einsum("bsf,fd->bsd", h, w_down)

    x = A_x
    xn = _layernorm(x, axis=-1)
    return x + _A_ref(xn, A_wqkv, A_wo) + _B_ref(xn, B_w_gate, B_w_up, B_w_down)
```

```python
def kernel(name, body, vgpr=256, accum=256, sgpr=102, extra=""):
    return f"""
.text
.globl {name}
.p2align 8
.type {name},@function
{name}:
{body}
s_endpgm
.section .rodata,"a"
.p2align 6
.amdhsa_kernel {name}
  .amdhsa_next_free_vgpr {vgpr}
  .amdhsa_next_free_sgpr {sgpr}
  .amdhsa_accum_offset {accum}
  .amdhsa_group_segment_fixed_size 0
  .amdhsa_kernarg_size 32
  .amdhsa_user_sgpr_count 2
  .amdhsa_user_sgpr_kernarg_segment_ptr 1
  .amdhsa_system_sgpr_workgroup_id_x 1
{extra}
.end_amdhsa_kernel
"""
HEAD = '.amdgcn_target "amdgcn-amd-amdhsa--gfx950"\n'
def epilogue(blk):
    return f"""
  s_load_dwordx2 s[4:5], s[0:1], 8
  s_waitcnt lgkmcnt(0)
  s_mov_b32 s8, s4
  s_mov_b32 s9, s5
  s_mov_b32 s10, 0x1000000
  s_mov_b32 s11, 0x20000
  v_lshrrev_b32 v1, 6, v0
  s_mul_i32 s3, s2, {blk//64}
  v_add_u32 v1, s3, v1
  v_lshlrev_b32 v1, 3, v1
  v_mov_b32 v2, s20
  v_mov_b32 v3, s21
  v_and_b32 v4, 63, v0
  v_cmp_eq_u32 vcc, 0, v4
  s_and_saveexec_b64 s[12:13], vcc
  buffer_store_dwordx2 v[2:3], v1, s[8:11], 0 offen
  s_waitcnt vmcnt(0)
"""
```

```python
from asmlib import *
def body(blk, loop, iters, nld, accv, acca, lds):
    s = f"""
  v_mov_b32 v15, v0
  s_load_dwordx2 s[4:5], s[0:1], 0
  s_waitcnt lgkmcnt(0)
  s_mov_b32 s8, s4
  s_mov_b32 s9, s5
  s_mov_b32 s10, 0x8000000
  s_mov_b32 s11, 0x20000
  v_lshlrev_b32 v1, 4, v0
  s_lshl_b32 s3, s2, 18
"""
    for i in range(nld):
        s += f"  buffer_load_dwordx4 v[{16+4*i}:{19+4*i}], v1, s[8:11], s3 offen\n  s_add_u32 s3, s3, {blk*16}\n"
    s += "  s_waitcnt vmcnt(0)\n"
    if lds:
        for i in range(65536//(blk*16)):
            s += f"  ds_write_b128 v1, v[{16+4*(i%nld)}:{19+4*(i%nld)}] offset:{i*blk*16}\n"
        s += "  v_and_b32 v2, 63, v0\n  v_lshlrev_b32 v3, 3, v2\n  v_lshlrev_b32 v2, 4, v2\n  s_waitcnt lgkmcnt(0)\n"
    for r in accv: s += f"  v_mov_b32 v{r}, 0\n"
    for r in acca: s += f"  v_accvgpr_write_b32 a{r}, 0\n"
    s += f"""
  s_barrier
  s_memrealtime s[22:23]
  s_memtime s[16:17]
  s_waitcnt lgkmcnt(0)
  s_mov_b32 s14, {iters}
1:
{loop}
  s_sub_u32 s14, s14, 1
  s_cmp_lg_u32 s14, 0
  s_cbranch_scc1 1b
  s_memtime s[18:19]
  s_memrealtime s[24:25]
  s_waitcnt lgkmcnt(0)
  s_sub_u32 s20, s18, s16
  s_sub_u32 s21, s24, s22
  v_mov_b32 v0, v15
""" + epilogue(blk)
    return s
def loop32(nu, nj, accbase, acct, lds, sets=2):
    L=[]
    fr = 4*(nu+nj)
    for st in range(2):
        cur = 16 + fr*(st%sets); nxt = 16 + fr*((st+1)%sets)
        R=[]
        if lds:
            for j in range(nj): R.append(f"ds_read_b128 v[{nxt+4*j}:{nxt+4*j+3}], v2 offset:{1024*(j+8*st)}")
            for u in range(nu):
                R.append(f"ds_read_b64_tr_b16 v[{nxt+4*nj+4*u}:{nxt+4*nj+4*u+1}], v3 offset:{16384+1024*(u+8*st)}")
                R.append(f"ds_read_b64_tr_b16 v[{nxt+4*nj+4*u+2}:{nxt+4*nj+4*u+3}], v3 offset:{16384+512+1024*(u+8*st)}")
            L.append("s_waitcnt lgkmcnt(0)")
        for u in range(nu):
            for j in range(nj):
                k=(u*nj+j)*16
                if acct=="mix":
                    acc = f"a[{k}:{k+15}]" if k<256 else f"v[{accbase+k-256}:{accbase+k-256+15}]"
                else: acc=f"{acct}[{accbase+k}:{accbase+k+15}]"
                L.append(f"v_mfma_f32_32x32x16_bf16 {acc}, v[{cur+4*nj+4*u}:{cur+4*nj+4*u+3}], v[{cur+4*j}:{cur+4*j+3}], {acc}")
                for _ in range(2):
                    if R: L.append(R.pop(0))
    return "\n".join(L)
def loop16(nu, nj, accbase, acct, lds):
    L=[]
    fr=4*(nu+nj)
    R=[]
    cur=16
    if lds:
        for j in range(nj): R.append(f"ds_read_b128 v[{cur+4*j}:{cur+4*j+3}], v2 offset:{1024*j}")
        for u in range(nu):
            R.append(f"ds_read_b64_tr_b16 v[{cur+4*nj+4*u}:{cur+4*nj+4*u+1}], v3 offset:{16384+1024*u}")
            R.append(f"ds_read_b64_tr_b16 v[{cur+4*nj+4*u+2}:{cur+4*nj+4*u+3}], v3 offset:{16384+512+1024*u}")
    for u in range(nu):
        for j in range(nj):
            k=(u*nj+j)*4
            if acct=="mix":
                acc = f"a[{k}:{k+3}]" if k<256 else f"v[{accbase+k-256}:{accbase+k-256+3}]"
            else: acc=f"{acct}[{accbase+k}:{accbase+k+3}]"
            L.append(f"v_mfma_f32_16x16x32_bf16 {acc}, v[{cur+4*nj+4*u}:{cur+4*nj+4*u+3}], v[{cur+4*j}:{cur+4*j+3}], {acc}")
            if R and (u*nj+j)%1==0: L.append(R.pop(0))
    return "\n".join(L)
launch=[]; ks=[]
def add(name, blk, b, vg, ac):
    k=f"{name}_kernel"
    launch.append(f"; @launch kernel={k} grid=(256,1,1) block=({blk},1,1) lds=65536")
    ks.append(kernel(k, b, vgpr=vg, accum=ac))
IT=32
for rep in range(2):
  for lds in (0,1):
    t=f"{'lds' if lds else 'reg'}{rep}"
    add(f"m32v_8w_{t}", 512, body(512, loop32(5,2,96,"v",lds), IT, 14, range(96,256), [], lds), 256, 256)
    add(f"m32a_8w_{t}", 512, body(512, loop32(5,2,0,"a",lds), IT, 14, [], range(160), lds), 256, 96)
    add(f"m16v_8w_{t}", 512, body(512, loop16(10,4,96,"v",lds), IT, 14, range(96,256), [], lds), 256, 256)
    add(f"m16a_8w_{t}", 512, body(512, loop16(10,4,0,"a",lds), IT, 14, [], range(160), lds), 256, 96)
    add(f"m32_4w_{t}", 256, body(256, loop32(5,4,192,"mix",lds), IT, 18, range(192,256), range(256), lds), 512, 256)
    add(f"m16_4w_{t}", 256, body(256, loop16(10,8,192,"mix",lds), IT, 18, range(192,256), range(256), lds), 512, 256)
open("mb3.s","w").write("\n".join(launch)+"\n"+HEAD+"".join(ks))
```

```python
from asmlib import *
from mb3 import loop16, loop32
def body(blk, loop, iters, nld, accv, acca):
    s = f"""
  v_mov_b32 v15, v0
  s_load_dwordx2 s[4:5], s[0:1], 0
  s_load_dwordx2 s[6:7], s[0:1], 8
  s_waitcnt lgkmcnt(0)
  s_mov_b32 s8, s4
  s_mov_b32 s9, s5
  s_mov_b32 s10, 0x8000000
  s_mov_b32 s11, 0x20000
  v_lshlrev_b32 v1, 4, v0
  s_lshl_b32 s3, s2, 18
"""
    for i in range(nld):
        s += f"  buffer_load_dwordx4 v[{16+4*i}:{19+4*i}], v1, s[8:11], s3 offen\n  s_add_u32 s3, s3, {blk*16}\n"
    s += "  s_waitcnt vmcnt(0)\n"
    for r in accv: s += f"  v_mov_b32 v{r}, 0\n"
    for r in acca: s += f"  v_accvgpr_write_b32 a{r}, 0\n"
    s += "  s_barrier\n"
    for seg in range(16):
        s += f"""
  s_memrealtime s[{32+4*seg}:{33+4*seg}]
  s_memtime s[{34+4*seg}:{35+4*seg}]
  s_mov_b32 s14, {iters}
1:
{loop}
  s_sub_u32 s14, s14, 1
  s_cmp_lg_u32 s14, 0
  s_cbranch_scc1 1b
"""
    s += """
  s_memrealtime s[96:97]
  s_memtime s[98:99]
  s_waitcnt lgkmcnt(0)
  s_mov_b32 s8, s6
  s_mov_b32 s9, s7
  s_mov_b32 s10, 0x1000000
  s_mov_b32 s11, 0x20000
  s_lshl_b32 s3, s2, 7
  v_mov_b32 v1, s3
  v_cmp_eq_u32 vcc, 0, v15
  s_and_saveexec_b64 s[12:13], vcc
"""
    for seg in range(16):
        s += f"  s_sub_u32 s20, s{38+4*seg}, s{34+4*seg}\n  s_sub_u32 s21, s{36+4*seg}, s{32+4*seg}\n  v_mov_b32 v2, s20\n  v_mov_b32 v3, s21\n  buffer_store_dwordx2 v[2:3], v1, s[8:11], 0 offen offset:{8*seg}\n  s_nop 1\n"
    s += "  s_waitcnt vmcnt(0)\n"
    return s
launch=[]; ks=[]
def add(name, blk, b, vg, ac):
    k=f"{name}_kernel"
    launch.append(f"; @launch kernel={k} grid=(256,1,1) block=({blk},1,1) lds=65536")
    ks.append(kernel(k, b, vgpr=vg, accum=ac))
add("p32_4w", 256, body(256, loop32(5,4,192,"mix",0), 4, 18, range(192,256), range(256)), 512, 256)
add("p16_4w", 256, body(256, loop16(10,8,192,"mix",0), 4, 18, range(192,256), range(256)), 512, 256)
add("p16_4w_long", 256, body(256, loop16(10,8,192,"mix",0), 40, 18, range(192,256), range(256)), 512, 256)
open("mb4.s","w").write("\n".join(launch)+"\n"+HEAD+"".join(ks))
```
